```python
import torch

def _softmax(x, axis=-1):
    return torch.softmax(x, dim=axis)
def _gelu(x):
    return torch.nn.functional.gelu(x, approximate="tanh")
def _silu(x):
    return torch.nn.functional.silu(x)
def _sigmoid(x):
    return torch.sigmoid(x)
def _layernorm(x, axis=-1, eps=1e-5):
    m = x.mean(dim=axis, keepdim=True)
    v = x.var(dim=axis, keepdim=True, unbiased=False)
    return (x - m) / torch.sqrt(v + eps)
def _scatter_add(tgt, idx, src, axis=0):
    return tgt.clone().index_add_(axis, idx, src)
def _segment_sum(src, seg, n):
    out = torch.zeros((n,) + src.shape[1:], dtype=src.dtype)
    return out.index_add_(0, seg, src)
def _pad(x, pw):
    flat = tuple(v for pair in reversed(pw) for v in pair)
    return torch.nn.functional.pad(x, flat)

kernel_name = 'sequential_preLN__linear_kernel_hedgehog__dense_activation_gelu__prompt'

def setup_inputs():

    _w = (lambda a: (lambda t: t.to(torch.bfloat16) if t.is_floating_point() else t)(torch.as_tensor(a)))
    def _A_setup():
        B, S, D, H = 1, 2048, 576, 32
        Dh = D // H
        return {
            "x": _w((lambda *s: torch.randn(*s, dtype=torch.bfloat16) * 0.05)(B, S, D)),
            "wqkv": _w((lambda *s: torch.randn(*s, dtype=torch.bfloat16) * 0.2)(D, 3 * D)),
            "w_phi": _w((lambda *s: torch.randn(*s, dtype=torch.bfloat16) * 0.2)(H, Dh, Dh) * (Dh ** -0.5)),
            "wo": _w((lambda *s: torch.randn(*s, dtype=torch.bfloat16) * 0.05)(D, D)),
        }
    _A_in = _A_setup()

    def _B_setup():
        B, S, D, F = 1, 2048, 576, 4608
        return {
            "x": _w((lambda *s: torch.randn(*s, dtype=torch.bfloat16) * 0.05)(B, S, D)),
            "w1": _w((lambda *s: torch.randn(*s, dtype=torch.bfloat16) * 3.2)(D, F) * (D ** -0.5)),
            "b1": _w((lambda *s: torch.randn(*s, dtype=torch.bfloat16) * 0.1)(F) * 0.01),
            "w2": _w((lambda *s: torch.randn(*s, dtype=torch.bfloat16) * 0.1)(F, D) * (F ** -0.5)),
            "b2": _w((lambda *s: torch.randn(*s, dtype=torch.bfloat16) * 0.1)(D) * 0.01),
        }
    _B_in = _B_setup()

    return {
        "A_x": _A_in["x"],
        "A_wqkv": _A_in["wqkv"],
        "A_w_phi": _A_in["w_phi"],
        "A_wo": _A_in["wo"],
        "B_x": _B_in["x"],
        "B_w1": _B_in["w1"],
        "B_b1": _B_in["b1"],
        "B_w2": _B_in["w2"],
        "B_b2": _B_in["b2"],
    }

def reference(A_x, A_wqkv, A_w_phi, A_wo, B_x, B_w1, B_b1, B_w2, B_b2):
    def _A_ref(x, wqkv, w_phi, wo):
        B, S, D = x.shape
        H = 32; Dh = D // H
        qkv = (lambda x, *d: x.permute(*d))((x @ wqkv).reshape(B, S, 3, H, Dh), 2, 0, 3, 1, 4)
        q, k, v = qkv[0], qkv[1], qkv[2]
        pq = torch.einsum("bhsd,hdf->bhsf", q, w_phi)
        pk = torch.einsum("bhsd,hdf->bhsf", k, w_phi)
        phi_q = torch.concatenate([_softmax(pq, axis=-1), _softmax(-pq, axis=-1)], axis=-1)
        phi_k = torch.concatenate([_softmax(pk, axis=-1), _softmax(-pk, axis=-1)], axis=-1)
        kv = torch.einsum("bhsf,bhsd->bhfd", phi_k, v)
        z  = torch.einsum("bhsf->bhf", phi_k)
        num = torch.einsum("bhqf,bhfd->bhqd", phi_q, kv)
        den = torch.einsum("bhqf,bhf->bhq", phi_q, z)[..., None] + 1e-6
        o = num / den
        return (lambda x, *d: x.permute(*d))(o, 0, 2, 1, 3).reshape(B, S, D) @ wo

    def _B_ref(x, w1, b1, w2, b2):
        h = torch.einsum("bsd,df->bsf", x, w1) + b1
        h = _gelu(h)
        return torch.einsum("bsf,fd->bsd", h, w2) + b2

    x = A_x
    h = x + _A_ref(_layernorm(x, axis=-1), A_wqkv, A_w_phi, A_wo)
    h2 = h + _B_ref(_layernorm(h, axis=-1), B_w1, B_b1, B_w2, B_b2)
    return h2
```

```python
import sys
from common import *
def build(kernels, header_extra=""):
    a = Asm()
    infos = []
    for g in kernels:
        infos.append(g(a))
    hdr = "; generated by gen/build.py (hand-written generator)\n" + header_extra
    for i in infos:
        hdr += f"; @launch kernel={i['name']} grid=({i['grid']},1,1) block=({i['block']},1,1) lds={i['lds']}\n"
    txt = hdr + '.amdgcn_target "amdgcn-amd-amdhsa--gfx950"\n.text\n' + a.text()
    txt += '.section .rodata,"a"\n'
    for i in infos:
        txt += ".p2align 6\n" + kernel_desc(i['name'], i['vgprs'], i.get('accum'), i.get('sgprs', 102))
    return txt, infos
```

```python
NAME = "sequential_preLN__linear_kernel_hedgehog__dense_activation_gelu__prompt"
S, D, H, DH, F = 2048, 576, 32, 18, 4608
KA_X, KA_WQKV, KA_WPHI, KA_WO, KA_BX, KA_W1, KA_B1, KA_W2, KA_B2, KA_OUT, KA_DBG, KA_WS = [8*i for i in range(12)]
W1F = 0
W2F = W1F + 8*36*18*1024
WOF = W2F + 8*36*18*1024
HF  = WOF + 36*18*1024
PART = HF + 128*18*1024
PHIQ = PART + 32*8*72*1024
KVA = PHIQ + 64*32*2304
KVA_HEAD = 2880
STAMP = KVA + 96*1024
TL = STAMP + 64*1024
DBGOFF = TL + 64*1024
WS_END = DBGOFF + 1024*1024
WS_BYTES = 268435456

class Asm:
    def __init__(self):
        self.lines = []
    def __call__(self, s):
        for l in s.strip("\n").split("\n"):
            self.lines.append("  " + l.strip() if not l.strip().endswith(":") else l.strip())
    def label(self, n): self.lines.append(n + ":")
    def comment(self, s): self.lines.append("  ; " + s)
    def text(self): return "\n".join(self.lines) + "\n"

def kernel_head(a, name):
    a.lines.append(f".globl {name}\n.p2align 8\n.type {name},@function\n{name}:")

def kernel_desc(name, vgprs, accum=None, sgprs=102):
    if accum is None: accum = min(256, (vgprs + 3)//4*4)
    return f""".amdhsa_kernel {name}
  .amdhsa_next_free_vgpr {vgprs}
  .amdhsa_next_free_sgpr {sgprs}
  .amdhsa_accum_offset {accum}
  .amdhsa_group_segment_fixed_size 0
  .amdhsa_kernarg_size 96
  .amdhsa_user_sgpr_count 2
  .amdhsa_user_sgpr_kernarg_segment_ptr 1
  .amdhsa_system_sgpr_workgroup_id_x 1
  .amdhsa_float_denorm_mode_32 3
.end_amdhsa_kernel
"""

def srd(a, dst, ptr, nbytes):
    a(f"s_mov_b32 s{dst}, s{ptr}")
    a(f"s_and_b32 s{dst+1}, s{ptr+1}, 0xffff")
    a(f"s_mov_b32 s{dst+2}, {nbytes}")
    a(f"s_mov_b32 s{dst+3}, 0x20000")

def vr(b, n=1):
    return f"v{b}" if n == 1 else f"v[{b}:{b+n-1}]"
def ar(b, n=1):
    return f"a{b}" if n == 1 else f"a[{b}:{b+n-1}]"
def sr(b, n=1):
    return f"s{b}" if n == 1 else f"s[{b}:{b+n-1}]"

def wo_kmap(s, g, e):
    idx = 4*s + g
    w, hf, q = idx//18, (idx//9) % 2, idx % 9
    v = 8*q + e
    head = 8*w + v//9
    d = 9*hf + v % 9
    return 18*head + d

def rho_ge(rho):
    if rho < 16: return rho >> 2, rho & 3
    return (rho-16) >> 2, 4 + (rho & 3)

STAMPS_ON = False
def stamp(a, idx):
    if not STAMPS_ON: return
    a(f"s_memtime s[{80+2*idx}:{81+2*idx}]")
def stamp_rt(a, idx):
    if not STAMPS_ON: return
    a(f"s_memrealtime s[{80+2*idx}:{81+2*idx}]")
def stamp_begin(a):
    if not STAMPS_ON: return
    a("s_memrealtime s[98:99]")
def stamp_end(a, ws_srd, slot, wavesel=True):
    if not STAMPS_ON: return
    a("s_waitcnt vmcnt(0) lgkmcnt(0)")
    a("s_memrealtime s[96:97]")
    a("v_lshrrev_b32 v2, 6, v0")
    a("v_and_b32 v3, 63, v0")
    a("s_waitcnt lgkmcnt(0)")
    a("v_cmp_eq_u32 vcc, 0, v3")
    a("s_and_saveexec_b64 s[78:79], vcc")
    a("s_cbranch_execz L_notl_%d" % slot)
    a(f"s_lshl_b32 s77, s2, 5")
    a(f"s_add_u32 s77, s77, {TL + slot*8192}")
    a("v_lshlrev_b32 v2, 3, v2")
    a("v_mov_b32 v4, s98")
    a("v_mov_b32 v5, s96")
    a(f"buffer_store_dwordx2 v[4:5], v2, s[{ws_srd}:{ws_srd+3}], s77 offen")
    a.label("L_notl_%d" % slot)
    a("s_mov_b64 exec, s[78:79]")
def stamp_flush(a, n, ws_srd, slot):
    if not STAMPS_ON: return
    a("s_waitcnt lgkmcnt(0)")
    a("v_cmp_eq_u32 vcc, 0, v0")
    a("s_and_saveexec_b64 s[78:79], vcc")
    a("s_cbranch_execz L_nostamp_%d" % slot)
    a(f"s_lshl_b32 s77, s2, 6")
    a(f"s_add_u32 s77, s77, {STAMP + slot*16384}")
    a("v_mov_b32 v0, 0")
    for i in range(n):
        a(f"v_mov_b32 v1, s{80+2*i}")
        a(f"buffer_store_dword v1, v0, s[{ws_srd}:{ws_srd+3}], s77 offen offset:{4*i}")
    a.label("L_nostamp_%d" % slot)
    a("s_mov_b64 exec, s[78:79]")

def dump_regs(a, regs, ws_srd, slot, wg=0, tag="d"):
    lab=f"L_dump_{tag}_{slot}"
    a(f"s_cmp_lg_u32 s2, {wg}")
    a(f"s_cbranch_scc1 {lab}")
    a("v_lshrrev_b32 v253, 6, v0")
    a(f"v_mul_u32_u24 v253, {len(regs)*256}, v253")
    a("v_and_b32 v252, 63, v0")
    a("v_lshl_add_u32 v253, v252, 2, v253")
    a(f"s_mov_b32 s70, {DBGOFF + slot*262144}")
    for i,r in enumerate(regs):
        a(f"buffer_store_dword v{r}, v253, s[{ws_srd}:{ws_srd+3}], s70 offen")
        a("s_add_u32 s70, s70, 256")
    a("s_waitcnt vmcnt(0)")
    a.label(lab)
```

```python
from common import *
import common
import math, struct
def f2u(x): return "0x%08x" % struct.unpack("<I", struct.pack("<f", x))[0]

C0 = -2.0*math.sqrt(2.0/math.pi)*math.log2(math.e)
C1 = C0*0.044715

V_LANE=1; V_AOFF=2
V_LDS0=7; V_LDS1=8; V_H1W=9; V_PART=10; V_BOFF=11; V_C0=12; V_C1=13; V_H1WB=14; V_T=15
ACC=16; XT=32; GT=48; PK=64; BIAS=72; BRAW=76
RING=80
HV=152
BV=224
S_WS=8; S_B1=12
S_W=40; S_C=41; S_RB=42; S_J=43; S_CUR=44; S_NXT=45; S_PART=46; S_B1OFF=47; S_W2B=48; S_JE=49
S_W1B=58; S_JN=59; S_PARTB=60; S_B1B=61; S_MASK=63
MAPPING='C'; ROTATE=True

def bfrag(bi):
    return ar(4*bi,4) if bi < 64 else vr(BV+4*(bi-64),4)

def gelu_ops():
    ops=[]
    groups=[list(range(4*g,4*g+4)) for g in range(4)]
    def st(k,e):
        x=XT+e; t=GT+e
        if k==0: return f"v_mul_f32 v{t}, v{x}, v{x}"
        if k==1: return f"v_fma_f32 v{t}, v{t}, v{V_C1}, v{V_C0}"
        if k==2: return f"v_mul_f32 v{t}, v{t}, v{x}"
        if k==3: return f"v_exp_f32 v{t}, v{t}"
        if k==4: return f"v_add_f32 v{t}, 1.0, v{t}"
        if k==5: return f"v_rcp_f32 v{t}, v{t}"
        if k==6: return f"v_mul_f32 v{t}, v{x}, v{t}"
    for g in groups:
        for k in range(7):
            for e in g: ops.append(st(k,e))
        tt=g[0]//4
        ops.append(f"v_cvt_pk_bf16_f32 v{PK+2*tt}, v{GT+g[0]}, v{GT+g[1]}")
        ops.append(f"v_cvt_pk_bf16_f32 v{PK+2*tt+1}, v{GT+g[2]}, v{GT+g[3]}")
        ops.append(f"ds_write_b64 v{V_H1W}, v[{PK+2*tt}:{PK+2*tt+1}] offset:{tt*1024}")
    return ops

def vm_wait_counts(extras_prev, extras_cur):
    N={}
    for s in range(18):
        n=16
        for off in range(-16,0):
            st=s+off
            ex = extras_cur if st>=0 else extras_prev
            n+=len(ex.get(st%18,[]))
        N[s]=n
    return N

def emit_tile(a, extras, extras_prev, pre_ops, fill_ops, bread=False):
    N=vm_wait_counts(extras_prev, extras)
    nfill=len(fill_ops); fi=0
    slot=0
    rd_issued=0
    def issue_reads(upto):
        nonlocal rd_issued
        while rd_issued<min(upto,72):
            bi=rd_issued
            base=V_LDS0 if bi<64 else V_LDS1
            a(f"ds_read_b128 {bfrag(bi)}, v{base} offset:{(bi%64)*1024}")
            rd_issued+=1
    if bread: issue_reads(12)
    NS=17*4-4
    for s in range(18):
        if bread: a(f"s_waitcnt vmcnt({N[s]}) lgkmcnt({max(0,rd_issued-(4*s+4))})")
        else: a(f"s_waitcnt vmcnt({N[s]})")
        for tt in range(4):
            if s==0:
                for op in pre_ops[tt]: a(op)
            slotreg=RING+4*s
            c = "0" if s==0 else vr(ACC+4*tt,4)
            a(f"v_mfma_f32_16x16x32_bf16 {vr(ACC+4*tt,4)}, {vr(slotreg,4)}, {bfrag(4*s+tt)}, {c}")
            if tt==0:
                for op in extras.get(s,[]): a(op)
                if s==0:
                    a(f"buffer_load_dwordx4 {vr(RING+4*17,4)}, v{V_AOFF+4}, s[{S_WS}:{S_WS+3}], s{S_CUR} offen offset:1024")
                else:
                    f=s-1
                    a(f"buffer_load_dwordx4 {vr(RING+4*f,4)}, v{V_AOFF+f//4}, s[{S_WS}:{S_WS+3}], s{S_NXT} offen offset:{(f%4)*1024}")
            if bread and tt==1:
                issue_reads(4*s+16)
            if s>=1:
                slot+=1
                tgt=(nfill*slot)//NS if slot<=NS else nfill
                while fi<min(tgt,nfill): a(fill_ops[fi]); fi+=1
    while fi<nfill: a(fill_ops[fi]); fi+=1

def gen_ffn(a, name="ffn_kernel", store_flags="sc1"):
    kernel_head(a, name)
    a("s_cmp_ge_u32 s2, 256")
    a(f"s_cbranch_scc1 {name}_end")
    stamp_begin(a)
    stamp(a,0); stamp_rt(a,6)
    a(f"s_load_dwordx2 s[4:5], s[0:1], {KA_WS}")
    a(f"s_load_dwordx2 s[6:7], s[0:1], {KA_B1}")
    a(f"v_and_b32 v{V_LANE}, 63, v0")
    a(f"v_lshrrev_b32 v{V_T}, 6, v0")
    a("s_nop 0")
    a(f"v_readfirstlane_b32 s{S_W}, v{V_T}")
    a("s_and_b32 s53, s2, 7\ns_lshr_b32 s54, s2, 3")
    if MAPPING=="C":
        a(f"s_lshr_b32 s55, s53, 1\ns_lshl_b32 s55, s55, 3\ns_and_b32 s56, s54, 7\ns_add_u32 s{S_RB}, s55, s56")
        a(f"s_and_b32 s55, s53, 1\ns_lshl_b32 s55, s55, 2\ns_lshr_b32 s57, s54, 3\ns_add_u32 s{S_C}, s55, s57")
        a(f"s_mov_b32 s{S_JE}, s56")
    else:
        a(f"s_mov_b32 s{S_C}, s53\ns_mov_b32 s{S_RB}, s54")
        a(f"s_mul_i32 s55, s54, 7282\ns_lshr_b32 s55, s55, 16\ns_mul_i32 s55, s55, 9\ns_sub_u32 s{S_JE}, s54, s55")
    if not ROTATE: a(f"s_mov_b32 s{S_JE}, 0")
    a(f"v_lshlrev_b32 v{V_LDS0}, 4, v{V_LANE}")
    a(f"v_add_u32 v{V_LDS1}, 0x10000, v{V_LDS0}")
    a(f"s_mul_i32 s50, s{S_W}, 18432")
    a(f"v_add_u32 v{V_AOFF}, s50, v{V_LDS0}")
    for m in range(1,5): a(f"v_add_u32 v{V_AOFF+m}, {4096*m}, v{V_AOFF}")
    a(f"s_and_b32 s50, s{S_W}, 1\ns_lshl_b32 s50, s50, 3\ns_lshr_b32 s51, s{S_W}, 1\ns_lshl_b32 s51, s51, 12\ns_add_u32 s50, s50, s51")
    a(f"v_add_u32 v{V_H1WB}, s50, v{V_LDS0}")
    a(f"s_lshl_b32 s50, s{S_W}, 11")
    a(f"v_add_u32 v{V_PART}, s50, v{V_LDS0}")
    a(f"v_lshrrev_b32 v{V_T}, 4, v{V_LANE}")
    a(f"v_lshlrev_b32 v{V_T}, 3, v{V_T}")
    a(f"s_lshl_b32 s50, s{S_W}, 5")
    a(f"v_add_u32 v{V_BOFF}, s50, v{V_T}")
    a(f"v_mov_b32 v{V_C0}, {f2u(C0)}\nv_mov_b32 v{V_C1}, {f2u(C1)}")
    a(f"s_mov_b32 s{S_MASK}, 0xffff0000")
    a("s_waitcnt lgkmcnt(0)")
    stamp(a,9)
    srd(a, S_WS, 4, WS_END)
    srd(a, S_B1, 6, F*2)
    a(f"s_lshl_b32 s50, s{S_RB}, 2\ns_add_u32 s50, s50, s{S_W}\ns_mul_i32 s50, s50, 18432\ns_add_u32 s50, s50, {HF}")
    for s in range(18):
        if s%4==0 and s>0: a("s_add_u32 s50, s50, 4096")
        a(f"buffer_load_dwordx4 {vr(HV+4*s,4)}, v{V_LDS0}, s[{S_WS}:{S_WS+3}], s50 offen offset:{(s%4)*1024}")
    a(f"s_mul_i32 s51, s{S_C}, {36*18*1024}")
    a(f"s_add_u32 s{S_W1B}, s51, {W1F}")
    a(f"s_add_u32 s{S_W2B}, s51, {W2F}")
    a(f"s_mul_i32 s{S_B1B}, s{S_C}, 1152")
    a(f"s_lshl_b32 s50, s{S_RB}, 3\ns_add_u32 s50, s50, s{S_C}\ns_mul_i32 s50, s50, 73728\ns_add_u32 s{S_PARTB}, s50, {PART}")
    a(f"s_mul_i32 s50, s{S_JE}, 73728\ns_add_u32 s{S_CUR}, s{S_W1B}, s50")
    def set_next(base_expr_reg):
        a(f"s_add_u32 s{S_JN}, s{S_JE}, 1\ns_cmp_eq_u32 s{S_JN}, 9\ns_cselect_b32 s{S_JN}, 0, s{S_JN}")
        a(f"s_mul_i32 s50, s{S_JN}, 73728\ns_add_u32 s{S_NXT}, s{base_expr_reg}, s50")
    set_next(S_W1B)
    a(f"s_lshl_b32 s50, s{S_JE}, 7\ns_add_u32 s{S_B1OFF}, s{S_B1B}, s50")
    for f in range(17):
        a(f"buffer_load_dwordx4 {vr(RING+4*f,4)}, v{V_AOFF+f//4}, s[{S_WS}:{S_WS+3}], s{S_CUR} offen offset:{(f%4)*1024}")
    a("s_mov_b32 s52, 0x3f803f80")
    for i in range(4): a(f"v_mov_b32 v{ACC+i}, 0")
    a("s_waitcnt vmcnt(17)")
    stamp(a,1)
    for i in range(72):
        a(f"v_dot2c_f32_bf16 v{ACC+(i%2)}, s52, v{HV+i}")
        a(f"v_dot2c_f32_bf16 v{ACC+2+(i%2)}, v{HV+i}, v{HV+i}")
    a("s_nop 2")
    a(f"v_add_f32 v{ACC}, v{ACC}, v{ACC+1}\nv_add_f32 v{ACC+2}, v{ACC+2}, v{ACC+3}")
    for instr in ("v_permlane32_swap_b32","v_permlane16_swap_b32"):
        a(f"v_mov_b32 v{ACC+1}, v{ACC}\nv_mov_b32 v{ACC+3}, v{ACC+2}\ns_nop 1")
        a(f"{instr} v{ACC}, v{ACC+1}\n{instr} v{ACC+2}, v{ACC+3}\ns_nop 1")
        a(f"v_add_f32 v{ACC}, v{ACC}, v{ACC+1}\nv_add_f32 v{ACC+2}, v{ACC+2}, v{ACC+3}")
    inv=f2u(1.0/576.0)
    a(f"v_mul_f32 v{ACC}, {inv}, v{ACC}")
    a(f"v_mul_f32 v{ACC+2}, {inv}, v{ACC+2}")
    a(f"v_fma_f32 v{ACC+2}, -v{ACC}, v{ACC}, v{ACC+2}")
    a(f"v_max_f32 v{ACC+2}, 0, v{ACC+2}")
    a(f"v_add_f32 v{ACC+2}, {f2u(1e-5)}, v{ACC+2}")
    a(f"v_rsq_f32 v{ACC+4}, v{ACC+2}")
    a("s_nop 0")
    a(f"v_mul_f32 v{ACC+6}, v{ACC}, v{ACC+4}")
    a(f"v_sub_f32 v{ACC+6}, 0, v{ACC+6}")
    a(f"v_mov_b32 v{ACC+5}, v{ACC+4}\nv_mov_b32 v{ACC+7}, v{ACC+6}")
    a(f"s_lshl_b32 s50, s{S_W}, 10")
    a(f"v_add_u32 v{V_H1W}, s50, v{V_LDS0}")
    a(f"v_add_u32 v{V_T}, 0x10000, v{V_H1W}")
    for s in range(18):
        for d in range(4):
            h=HV+4*s+d; t=XT+2*(d%4)+8*(s%2)
            a(f"v_lshlrev_b32 v{t}, 16, v{h}")
            a(f"v_and_b32 v{t+1}, s{S_MASK}, v{h}")
        for d in range(4):
            t=XT+2*d+8*(s%2)
            a(f"v_pk_fma_f32 v[{t}:{t+1}], v[{t}:{t+1}], v[{ACC+4}:{ACC+5}], v[{ACC+6}:{ACC+7}]")
        for d in range(4):
            h=HV+4*s+d; t=XT+2*d+8*(s%2)
            a(f"v_cvt_pk_bf16_f32 v{h}, v{t}, v{t+1}")
        if s<16: a(f"ds_write_b128 v{V_H1W}, {vr(HV+4*s,4)} offset:{s*4096}")
        else: a(f"ds_write_b128 v{V_T}, {vr(HV+4*s,4)} offset:{(s-16)*4096}")
    a("s_waitcnt lgkmcnt(0)")
    a("s_barrier")
    stamp(a,2)
    ex1={1:[f"buffer_load_dwordx2 v[{BRAW}:{BRAW+1}], v{V_BOFF}, s[{S_B1}:{S_B1+3}], s{S_B1OFF} offen"]}
    nop4=[[],[],[],[]]
    emit_tile(a,ex1,{},nop4,[],bread=True)
    a("s_barrier")
    a(f"s_mov_b32 s{S_J}, 1")
    def advance(phase):
        if phase==1:
            a(f"s_lshl_b32 s50, s{S_JE}, 13")
            a(f"v_add_u32 v{V_H1W}, s50, v{V_H1WB}")
        else:
            a(f"s_lshl_b32 s50, s{S_JE}, 13\ns_add_u32 s{S_PART}, s{S_PARTB}, s50")
        a(f"s_mov_b32 s{S_JE}, s{S_JN}\ns_mov_b32 s{S_CUR}, s{S_NXT}")
        a(f"s_add_u32 s{S_JN}, s{S_JE}, 1\ns_cmp_eq_u32 s{S_JN}, 9\ns_cselect_b32 s{S_JN}, 0, s{S_JN}")
        if phase==1:
            a(f"s_cmp_eq_u32 s{S_J}, 8\ns_cselect_b32 s51, s{S_W2B}, s{S_W1B}")
            a(f"s_mul_i32 s50, s{S_JN}, 73728\ns_add_u32 s{S_NXT}, s51, s50")
            a(f"s_lshl_b32 s50, s{S_JE}, 7\ns_add_u32 s{S_B1OFF}, s{S_B1B}, s50")
        else:
            a(f"s_mul_i32 s50, s{S_JN}, 73728\ns_add_u32 s{S_NXT}, s{S_W2B}, s50")
    a.label(f"{name}_p1loop")
    advance(1)
    def pre1():
        pre=[]
        unpack=[f"v_lshlrev_b32 v{BIAS}, 16, v{BRAW}", f"v_and_b32 v{BIAS+1}, s{S_MASK}, v{BRAW}",
                f"v_lshlrev_b32 v{BIAS+2}, 16, v{BRAW+1}", f"v_and_b32 v{BIAS+3}, s{S_MASK}, v{BRAW+1}"]
        for tt in range(4):
            ops=[f"v_add_f32 v{XT+4*tt+i}, v{ACC+4*tt+i}, v{BIAS+i}" for i in range(4)]
            pre.append((unpack if tt==0 else [])+ops)
        return pre
    emit_tile(a,ex1,ex1,pre1(),gelu_ops())
    a(f"s_add_u32 s{S_J}, s{S_J}, 1")
    a(f"s_cmp_lt_u32 s{S_J}, 9")
    a(f"s_cbranch_scc1 {name}_p1loop")
    stamp(a,3)
    a(f"s_lshl_b32 s50, s{S_JE}, 13")
    a(f"v_add_u32 v{V_H1W}, s50, v{V_H1WB}")
    a("s_waitcnt vmcnt(17)")
    a("s_nop 4")
    for p in pre1():
        for op in p: a(op)
    for op in gelu_ops(): a(op)
    a("s_waitcnt lgkmcnt(0)")
    a("s_barrier")
    stamp(a,4)
    a(f"s_mov_b32 s{S_JE}, s{S_JN}\ns_mov_b32 s{S_CUR}, s{S_NXT}")
    set_next(S_W2B)
    emit_tile(a,{},ex1,nop4,[],bread=True)
    ex2={1:[f"buffer_store_dwordx4 v[{PK}:{PK+3}], v{V_PART}, s[{S_WS}:{S_WS+3}], s{S_PART} offen {store_flags}"],
         2:[f"buffer_store_dwordx4 v[{PK+4}:{PK+7}], v{V_PART}, s[{S_WS}:{S_WS+3}], s{S_PART} offen offset:1024 {store_flags}"]}
    if store_flags=="none": ex2={1:[],2:[]}
    def pre2():
        pre=[]
        for tt in range(4):
            pre.append([f"v_cvt_pk_bf16_f32 v{PK+2*tt}, v{ACC+4*tt}, v{ACC+4*tt+1}",
                        f"v_cvt_pk_bf16_f32 v{PK+2*tt+1}, v{ACC+4*tt+2}, v{ACC+4*tt+3}"])
        return pre
    advance(2)
    emit_tile(a,ex2,{},pre2(),[])
    a(f"s_mov_b32 s{S_J}, 2")
    a.label(f"{name}_p2loop")
    advance(2)
    emit_tile(a,ex2,ex2,pre2(),[])
    a(f"s_add_u32 s{S_J}, s{S_J}, 1")
    a(f"s_cmp_lt_u32 s{S_J}, 9")
    a(f"s_cbranch_scc1 {name}_p2loop")
    a(f"s_lshl_b32 s50, s{S_JE}, 13\ns_add_u32 s{S_PART}, s{S_PARTB}, s50")
    a("s_nop 7")
    for p in pre2():
        for op in p: a(op)
    for op in ex2[1]+ex2[2]: a(op)
    stamp(a,5); stamp_rt(a,7)
    if common.STAMPS_ON: a("s_waitcnt vmcnt(0)"); stamp(a,8)
    if common.STAMPS_ON: a("v_mov_b32 v15, v0")
    stamp_end(a,S_WS,1)
    stamp_flush(a,10,S_WS,0)
    a.label(f"{name}_end")
    a("s_endpgm")
    return dict(name=name, grid=256, block=256, lds=73728, vgprs=512, accum=256)
```

```python
import sys
sys.path.insert(0,'gen'); sys.path.insert(0,'tools')
import common
from common import *
from build import build
from p0 import gen_p0
from p1 import gen_p1
from p2 import gen_p2
from ffn import gen_ffn
from red import gen_red
HDR = open('cdna_kernels/'+NAME+'.s.ref').read().split('; Override launch')[0]
def make(kernels=None):
    txt,_=build(kernels or [gen_p0,gen_p1,gen_p2,gen_ffn,gen_red])
    return HDR + txt
if __name__=="__main__":
    out = sys.argv[1] if len(sys.argv)>1 else 'cdna_kernels/'+NAME+'.s'
    open(out,'w').write(make())
    print("wrote",out)
```

```python
from common import *

def gen_p0(a, name="p0_kernel"):
    kernel_head(a, name)
    a("s_cmp_ge_u32 s2, 256")
    a(f"s_cbranch_scc1 {name}_end")
    stamp_begin(a)
    a(f"s_load_dwordx2 s[4:5], s[0:1], {KA_W1}")
    a(f"s_load_dwordx2 s[6:7], s[0:1], {KA_W2}")
    a(f"s_load_dwordx2 s[36:37], s[0:1], {KA_WO}")
    a(f"s_load_dwordx2 s[38:39], s[0:1], {KA_WS}")
    a("v_and_b32 v1, 63, v0")
    a("v_lshrrev_b32 v2, 6, v0")
    a("s_nop 0")
    a("v_readfirstlane_b32 s40, v2")
    a("s_and_b32 s41, s2, 7")
    a("s_lshr_b32 s42, s2, 3")
    a("s_lshl_b32 s42, s42, 2")
    a("s_add_u32 s42, s42, s40")
    a("s_waitcnt lgkmcnt(0)")
    srd(a, 8, 4, 576*4608*2)
    srd(a, 12, 6, 4608*576*2)
    srd(a, 16, 36, 576*576*2)
    srd(a, 20, 38, WS_END)
    a("s_cmp_ge_u32 s2, 24")
    a(f"s_cbranch_scc1 {name}_nozero")
    a("v_mov_b32 v4, 0\nv_mov_b32 v5, 0\nv_mov_b32 v6, 0\nv_mov_b32 v7, 0")
    a("v_lshlrev_b32 v3, 4, v0")
    a("s_lshl_b32 s43, s2, 12")
    a(f"s_add_u32 s43, s43, {KVA}")
    a("buffer_store_dwordx4 v[4:7], v3, s[20:23], s43 offen")
    a.label(f"{name}_nozero")
    a("v_lshrrev_b32 v8, 3, v1")
    a("v_and_b32 v9, 7, v1")
    a("v_and_b32 v10, 6, v8")
    a("v_xor_b32 v9, v9, v10")
    a("v_lshlrev_b32 v9, 4, v9")
    for m in range(4):
        a(f"v_add_u32 v11, {8*m}, v8")
        a(f"v_mul_u32_u24 v{12+m}, 9216, v11")
        a(f"v_add_u32 v{12+m}, v{12+m}, v9")
        a(f"v_mul_u32_u24 v{16+m}, 1152, v11")
        a(f"v_add_u32 v{16+m}, v{16+m}, v9")
    a("v_lshrrev_b32 v24, 4, v1")
    a("v_and_b32 v25, 15, v1")
    a("v_lshrrev_b32 v26, 2, v25")
    a("v_lshl_add_u32 v26, v24, 2, v26")
    a("v_and_b32 v27, 3, v25")
    a("v_lshrrev_b32 v28, 1, v27")
    a("v_and_b32 v29, 1, v27")
    a("v_and_b32 v30, 6, v26")
    for tl in range(4):
        a(f"v_add_u32 v31, {2*tl}, v28")
        a("v_xor_b32 v31, v31, v30")
        a("v_lshlrev_b32 v31, 4, v31")
        a(f"v_lshl_add_u32 v{20+tl}, v26, 7, v31")
        a(f"v_lshl_add_u32 v{20+tl}, v29, 3, v{20+tl}")
    a("v_lshlrev_b32 v32, 4, v1")
    a("s_mul_i32 s44, s40, 12288")
    for k in range(3):
        kind, src, dst = 50+4*k, 51+4*k, 52+4*k
        a(f"s_add_u32 s45, s42, {128*k}")
        a(f"s_mov_b32 s{kind}, 0")
        a("s_cmp_lt_u32 s45, 162")
        a(f"s_cbranch_scc1 {name}_dec{k}")
        a(f"s_mov_b32 s{kind}, 1")
        a("s_sub_u32 s45, s45, 162")
        a("s_cmp_lt_u32 s45, 162")
        a(f"s_cbranch_scc1 {name}_dec{k}")
        a(f"s_mov_b32 s{kind}, 2")
        a("s_sub_u32 s45, s45, 162")
        a("s_cmp_lt_u32 s45, 21")
        a(f"s_cselect_b32 s{kind}, 2, 3")
        a("s_mul_i32 s46, s41, 21")
        a("s_add_u32 s45, s45, s46")
        a("s_cmp_lt_u32 s45, 162")
        a(f"s_cselect_b32 s{kind}, s{kind}, 3")
        a.label(f"{name}_dec{k}")
        a("s_mul_i32 s46, s45, 7282")
        a("s_lshr_b32 s46, s46, 16")
        a("s_mul_i32 s47, s46, 9")
        a("s_sub_u32 s47, s45, s47")
        a(f"s_cmp_lt_u32 s{kind}, 2")
        a("s_cselect_b32 s48, s41, 0")
        a("s_mul_i32 s48, s48, 36")
        a("s_lshl_b32 s49, s47, 2")
        a("s_add_u32 s48, s48, s49")
        a("s_mul_i32 s48, s48, 18")
        a("s_add_u32 s48, s48, s46")
        a("s_lshl_b32 s48, s48, 10")
        a(f"s_mov_b32 s49, {W1F}")
        a(f"s_cmp_eq_u32 s{kind}, 1")
        a(f"s_cselect_b32 s49, {W2F}, s49")
        a(f"s_cmp_eq_u32 s{kind}, 2")
        a(f"s_cselect_b32 s49, {WOF}, s49")
        a(f"s_add_u32 s{dst}, s48, s49")
        a("s_lshl_b32 s47, s47, 7")
        a(f"s_add_u32 m0, s44, {4096*k}")
        a(f"s_cmp_eq_u32 s{kind}, 0")
        a(f"s_cbranch_scc0 {name}_n0_{k}")
        a(f"s_mul_i32 s48, s46, {32*9216}")
        a("s_mul_i32 s49, s41, 1152")
        a("s_add_u32 s48, s48, s49")
        a(f"s_add_u32 s{src}, s48, s47")
        for m in range(4):
            a(f"buffer_load_dwordx4 v{12+m}, s[8:11], s{src} offen lds")
            if m < 3: a("s_add_u32 m0, m0, 1024\ns_nop 0")
        a(f"s_branch {name}_iss{k}")
        a.label(f"{name}_n0_{k}")
        a(f"s_cmp_eq_u32 s{kind}, 1")
        a(f"s_cbranch_scc0 {name}_n1_{k}")
        a("s_mul_i32 s48, s41, 576")
        a("s_lshl_b32 s49, s46, 5")
        a("s_add_u32 s48, s48, s49")
        a("s_mul_i32 s48, s48, 1152")
        a(f"s_add_u32 s{src}, s48, s47")
        for m in range(4):
            a(f"buffer_load_dwordx4 v{16+m}, s[12:15], s{src} offen lds")
            if m < 3: a("s_add_u32 m0, m0, 1024\ns_nop 0")
        a(f"s_branch {name}_iss{k}")
        a.label(f"{name}_n1_{k}")
        if k == 2:
            a(f"s_cmp_eq_u32 s{kind}, 2")
            a(f"s_cbranch_scc0 {name}_iss{k}")
            for m in range(4):
                a(f"v_add_u32 v33, {8*m}, v8")
                a("v_and_b32 v34, 15, v33")
                a("v_lshrrev_b32 v34, 2, v34")
                a("v_and_b32 v35, 3, v33")
                a(f"v_add_u32 v35, {4 if m >= 2 else 0}, v35")
                a("s_lshl_b32 s48, s46, 2")
                a("v_add_u32 v34, s48, v34")
                a("v_mul_u32_u24 v36, 57, v34")
                a("v_lshrrev_b32 v36, 9, v36")
                a("v_mul_u32_u24 v37, 9, v36")
                a("v_sub_u32 v37, v34, v37")
                a("v_lshl_add_u32 v37, v37, 3, v35")
                a("v_mul_u32_u24 v38, 57, v37")
                a("v_lshrrev_b32 v38, 9, v38")
                a("v_mul_u32_u24 v39, 9, v38")
                a("v_sub_u32 v39, v37, v39")
                a("v_lshrrev_b32 v40, 1, v36")
                a("v_and_b32 v41, 1, v36")
                a("v_lshl_add_u32 v40, v40, 3, v38")
                a("v_mul_u32_u24 v40, 18, v40")
                a("v_mul_u32_u24 v41, 9, v41")
                a("v_add3_u32 v40, v40, v41, v39")
                a("v_mul_u32_u24 v40, 1152, v40")
                a("v_add_u32 v40, v40, v9")
                a(f"buffer_load_dwordx4 v40, s[16:19], s47 offen lds")
                if m < 3: a("s_add_u32 m0, m0, 1024")
        a.label(f"{name}_iss{k}")
    a("s_waitcnt vmcnt(0)")
    for k in range(3):
        kind, src, dst = 50+4*k, 51+4*k, 52+4*k
        if k == 2:
            a(f"s_cmp_eq_u32 s{kind}, 3")
            a(f"s_cbranch_scc1 {name}_fin")
        a(f"s_add_u32 s45, s44, {4096*k}")
        for tl in range(4):
            a(f"v_add_u32 v44, s45, v{20+tl}")
            a(f"ds_read_b64_tr_b16 v[{48+4*tl}:{49+4*tl}], v44")
            a(f"ds_read_b64_tr_b16 v[{50+4*tl}:{51+4*tl}], v44 offset:2048")
        for tl in range(4):
            a(f"s_waitcnt lgkmcnt({2*(3-tl)})")
            a(f"buffer_store_dwordx4 v[{48+4*tl}:{51+4*tl}], v32, s[20:23], s{dst} offen")
            if tl < 3: a(f"s_add_u32 s{dst}, s{dst}, {18*1024}")
        a("s_nop 1")
    a.label(f"{name}_fin")
    stamp_end(a, 20, 0)
    a.label(f"{name}_end")
    a("s_endpgm")
    return dict(name=name, grid=256, block=256, lds=49152, vgprs=64)
```

```python
from common import *
import common, struct, math
def f2u(x): return "0x%08x" % struct.unpack("<I", struct.pack("<f", x))[0]
LOG2E = math.log2(math.e)

SLOT=32768
WPH=131072
CS=WPH+8192
LDS_BYTES=CS+512
PKI=0
VI=20480
STG=36864
V_LANE=1
V_A=2
V_B=6
V_XE=10; V_XO=11; V_WD=12
V_T=13; V_T2=14; V_T3=15
ASET=16
BSET=48
ACC=64
V_SQ=128
V_CS=130
WF=136
E0=160
S_X=8; S_WQ=12; S_WP=16; S_WS=20
S_W=40; S_HP=41; S_RB=42; S_TP=43; S_C=44; S_SX=45; S_SW=46; S_M0=47; S_DELTA=48; S_SLOT=49
S_ONES=50; S_MK=52
S_DSX=72; S_DSW=73; S_DM0=74

MAPPING="A"
DEBUG=False

def dma_ops(m):
    ops=[]
    ops.append(f"s_add_u32 m0, s{S_DM0}, {m*1024}")
    ops.append(f"s_add_u32 s57, s{S_DSX}, {m*8*1152}")
    ops.append(f"buffer_load_dwordx4 v{V_XE if m%2==0 else V_XO}, s[{S_X}:{S_X+3}], s57 offen lds")
    ops.append(f"s_add_u32 m0, s{S_DM0}, {16384+m*1024}")
    ops.append(f"s_add_u32 s57, s{S_DSW}, {m*4*3456}")
    ops.append(f"buffer_load_dwordx4 v{V_WD}, s[{S_WQ}:{S_WQ+3}], s57 offen lds")
    return ops

def reads(sig):
    st=ASET+16*(sig%2)
    r=[f"ds_read_b128 {vr(BSET+4*sig,4)}, v{V_B+sig}"]
    for T in range(4):
        r.append(f"ds_read_b64_tr_b16 {vr(st+4*T,2)}, v{V_A+T} offset:{sig*4096}")
        r.append(f"ds_read_b64_tr_b16 {vr(st+4*T+2,2)}, v{V_A+T} offset:{sig*4096+1024}")
    return r

def softmax_ops(p0, p1, mx, mn, pos, neg, tmp):
    src=[p0+i for i in range(16)]+[p1,p1+1]
    o=[]
    o.append(f"v_max3_f32 v{mx}, v{src[0]}, v{src[1]}, v{src[2]}")
    o.append(f"v_min3_f32 v{mn}, v{src[0]}, v{src[1]}, v{src[2]}")
    for i in range(3,17,2):
        o.append(f"v_max3_f32 v{mx}, v{mx}, v{src[i]}, v{src[i+1]}")
        o.append(f"v_min3_f32 v{mn}, v{mn}, v{src[i]}, v{src[i+1]}")
    o.append(f"v_max_f32 v{mx}, v{mx}, v{src[17]}")
    o.append(f"v_min_f32 v{mn}, v{mn}, v{src[17]}")
    o.append(f"v_mul_f32 v{mx}, s59, v{mx}")
    o.append(f"v_mul_f32 v{mn}, s58, v{mn}")
    ep=[tmp+i for i in range(18)]; en=[tmp+18+i for i in range(18)]
    for i in range(18):
        o.append(f"v_fma_f32 v{ep[i]}, v{src[i]}, s58, v{mx}")
        o.append(f"v_fma_f32 v{en[i]}, v{src[i]}, s59, v{mn}")
    for i in range(18):
        o.append(f"v_exp_f32 v{ep[i]}, v{ep[i]}")
        o.append(f"v_exp_f32 v{en[i]}, v{en[i]}")
    sp,sn=tmp+36,tmp+37
    o.append(f"v_add_f32 v{sp}, v{ep[0]}, v{ep[1]}")
    o.append(f"v_add_f32 v{sn}, v{en[0]}, v{en[1]}")
    for i in range(2,18):
        o.append(f"v_add_f32 v{sp}, v{sp}, v{ep[i]}")
        o.append(f"v_add_f32 v{sn}, v{sn}, v{en[i]}")
    o.append(f"v_rcp_f32 v{sp}, v{sp}")
    o.append(f"v_rcp_f32 v{sn}, v{sn}")
    o.append("s_nop 0")
    for i in range(18):
        o.append(f"v_mul_f32 v{ep[i]}, v{ep[i]}, v{sp}")
        o.append(f"v_mul_f32 v{en[i]}, v{en[i]}, v{sn}")
    for i in range(9):
        o.append(f"v_cvt_pk_bf16_f32 v{pos+i}, v{ep[2*i]}, v{ep[2*i+1]}")
        o.append(f"v_cvt_pk_bf16_f32 v{neg+i}, v{en[2*i]}, v{en[2*i+1]}")
    return o

def gen_p1(a, name="p1_kernel", zero_by_ticket=False):
    kernel_head(a, name)
    a("s_cmp_ge_u32 s2, 256")
    a(f"s_cbranch_scc1 {name}_end")
    stamp_begin(a)
    a(f"s_load_dwordx2 s[4:5], s[0:1], {KA_X}")
    a(f"s_load_dwordx2 s[6:7], s[0:1], {KA_WQKV}")
    a(f"s_load_dwordx2 s[36:37], s[0:1], {KA_WPHI}")
    a(f"s_load_dwordx2 s[38:39], s[0:1], {KA_WS}")
    a(f"v_and_b32 v{V_LANE}, 63, v0")
    a(f"v_lshrrev_b32 v{V_T}, 6, v0")
    a("s_nop 0")
    a(f"v_readfirstlane_b32 s{S_W}, v{V_T}")
    a("s_and_b32 s53, s2, 7\ns_lshr_b32 s54, s2, 3")
    if MAPPING=="A":
        a(f"s_and_b32 s55, s53, 3\ns_lshl_b32 s55, s55, 2\ns_and_b32 s56, s54, 3\ns_add_u32 s{S_HP}, s55, s56")
        a(f"s_lshr_b32 s55, s53, 2\ns_lshl_b32 s55, s55, 3\ns_lshr_b32 s56, s54, 2\ns_add_u32 s{S_RB}, s55, s56")
    else:
        a(f"s_lshl_b32 s55, s53, 1\ns_lshr_b32 s56, s54, 4\ns_add_u32 s{S_RB}, s55, s56\ns_and_b32 s{S_HP}, s54, 15")
    a(f"s_lshl_b32 s{S_TP}, s{S_RB}, 2\ns_add_u32 s{S_TP}, s{S_TP}, s{S_W}")
    L=V_LANE
    a(f"v_lshrrev_b32 v{V_T}, 3, v{L}\nv_and_b32 v{V_T2}, 7, v{L}\nv_lshrrev_b32 v{V_T3}, 1, v{V_T}\nv_xor_b32 v{V_T2}, v{V_T2}, v{V_T3}")
    a(f"v_mul_u32_u24 v{V_T}, 1152, v{V_T}\nv_lshl_add_u32 v{V_XE}, v{V_T2}, 4, v{V_T}")
    a(f"v_xor_b32 v{V_T2}, 4, v{V_T2}\nv_lshl_add_u32 v{V_XO}, v{V_T2}, 4, v{V_T}")
    a(f"v_lshrrev_b32 v{V_T}, 4, v{L}\nv_and_b32 v{V_T2}, 15, v{L}\nv_lshlrev_b32 v{V_T3}, 2, v{V_T}\nv_xor_b32 v{V_T2}, v{V_T2}, v{V_T3}")
    a(f"v_lshrrev_b32 v16, 2, v{V_T2}")
    a(f"v_and_b32 v17, 3, v{V_T2}")
    a(f"v_lshrrev_b32 v18, 1, v17\nv_lshl_add_u32 v18, v17, 1, v18")
    a(f"v_mul_u32_u24 v19, 1152, v16\nv_lshl_add_u32 v19, v18, 3, v19")
    a(f"v_cmp_ne_u32 vcc, 3, v17\ns_nop 1\nv_cndmask_b32 v18, 0, v17, vcc")
    a(f"v_mul_u32_u24 v18, 1152, v18\nv_add_u32 v18, 32, v18")
    a(f"v_cmp_eq_u32 vcc, 3, v16\ns_nop 1\nv_cndmask_b32 v19, v19, v18, vcc")
    a(f"v_mul_u32_u24 v{V_T}, 3456, v{V_T}\nv_add_u32 v{V_WD}, v{V_T}, v19")
    a(f"v_lshrrev_b32 v16, 4, v{L}\nv_and_b32 v17, 1, v16\nv_lshrrev_b32 v18, 1, v16")
    a(f"v_and_b32 v19, 15, v{L}\nv_lshrrev_b32 v20, 2, v19\nv_and_b32 v21, 3, v19")
    a(f"v_lshrrev_b32 v22, 1, v21\nv_lshl_add_u32 v22, v17, 1, v22\nv_and_b32 v23, 1, v21")
    a(f"v_lshl_add_u32 v24, v18, 3, v20\nv_lshlrev_b32 v24, 8, v24\nv_add_u32 v24, 16384, v24")
    a(f"v_lshlrev_b32 v25, 2, v20")
    a(f"v_lshrrev_b32 v26, 1, v22\nv_lshl_add_u32 v26, v23, 1, v26\nv_and_b32 v27, 1, v22\nv_lshlrev_b32 v27, 3, v27")
    for T in range(3):
        a(f"v_add_u32 v28, {4*T}, v26\nv_xor_b32 v28, v28, v25\nv_lshl_add_u32 v28, v28, 4, v27\nv_add_u32 v{V_A+T}, v24, v28")
    a(f"v_add_u32 v28, 12, v22\nv_xor_b32 v28, v28, v25\nv_lshl_add_u32 v{V_A+3}, v28, 4, v24")
    a(f"v_and_b32 v16, 31, v{L}\nv_lshrrev_b32 v17, 5, v{L}\nv_lshrrev_b32 v18, 1, v16\nv_and_b32 v18, 7, v18")
    a(f"s_lshl_b32 s55, s{S_W}, 12\nv_lshlrev_b32 v19, 7, v16\nv_add_u32 v19, s55, v19")
    for sg in range(4):
        a(f"v_add_u32 v20, {2*sg}, v17\nv_xor_b32 v20, v20, v18\nv_lshl_add_u32 v{V_B+sg}, v20, 4, v19")
    for i in range(64): a(f"v_mov_b32 v{ACC+i}, 0")
    for i in range(6): a(f"v_mov_b32 v{V_SQ+i}, 0")
    for i in range(24): a(f"v_mov_b32 v{WF+i}, 0")
    a(f"s_mov_b32 s{S_ONES}, 0x3f803f80")
    a(f"s_mov_b32 s{S_MK}, 0xff000000\ns_mov_b32 s{S_MK+1}, 0xff000000")
    a(f"s_mov_b32 s58, {f2u(LOG2E)}\ns_mov_b32 s59, {f2u(-LOG2E)}")
    a(f"s_mov_b32 s66, {(-3*SLOT)&0xffffffff:#x}\ns_mov_b32 s67, {SLOT}")
    a(f"v_mov_b32 v{V_T3}, 0x3f803f80")
    a(f"v_lshlrev_b32 v16, 3, v{L}\nv_add_u32 v16, {CS}, v16\nv_mov_b32 v18, 0\nv_mov_b32 v19, 0")
    a(f"ds_write_b64 v16, v[18:19]")
    a("s_waitcnt lgkmcnt(0)")
    srd(a,S_X,4,S*D*2); srd(a,S_WQ,6,D*3*D*2); srd(a,S_WP,36,H*DH*DH*2); srd(a,S_WS,38,WS_END)
    a(f"s_lshl_b32 s55, s{S_W}, 11\ns_add_u32 m0, s55, {WPH}")
    a(f"s_mul_i32 s56, s{S_HP}, 1296")
    a(f"v_lshlrev_b32 v16, 4, v{L}")
    a(f"buffer_load_dwordx4 v16, s[{S_WP}:{S_WP+3}], s56 offen lds")
    a(f"s_add_u32 m0, m0, 1024\ns_add_u32 s56, s56, 1024")
    a(f"buffer_load_dwordx4 v16, s[{S_WP}:{S_WP+3}], s56 offen lds")
    a(f"s_mul_i32 s{S_DSX}, s{S_TP}, {32*1152}")
    a(f"s_lshl_b32 s55, s{S_W}, 4\ns_mul_i32 s55, s55, 3456\ns_mul_i32 s56, s{S_HP}, 72\ns_add_u32 s{S_DSW}, s55, s56")
    a(f"s_lshl_b32 s{S_DM0}, s{S_W}, 12")
    def dma_advance():
        return [f"s_add_u32 s{S_DSX}, s{S_DSX}, 128", f"s_add_u32 s{S_DSW}, s{S_DSW}, {64*3456}",
                f"s_add_u32 s{S_DM0}, s{S_DM0}, {SLOT}"]
    for c in range(3):
        for m in range(4):
            for op in dma_ops(m): a(op)
        for op in dma_advance(): a(op)
    a("s_waitcnt vmcnt(24)")
    a(f"v_and_b32 v16, 31, v{L}\nv_lshrrev_b32 v17, 3, v16\nv_and_b32 v18, 3, v16\nv_lshl_add_u32 v17, v17, 2, v18")
    a(f"v_lshrrev_b32 v18, 5, v{L}")
    a(f"s_lshl_b32 s55, s{S_W}, 11\ns_add_u32 s55, s55, {WPH}")
    a(f"v_mul_u32_u24 v19, 720, v18\nv_lshl_add_u32 v19, v17, 1, v19\nv_add_u32 v19, s55, v19")
    a(f"v_mul_u32_u24 v20, 648, v18\nv_lshl_add_u32 v20, v17, 1, v20\nv_add_u32 v20, s55, v20")
    M0=(0xF0F0F0F0<<32)|0x0F0F0F0F
    def setexec(m): a(f"s_mov_b32 exec_lo, {m&0xffffffff:#x}\ns_mov_b32 exec_hi, {m>>32:#x}")
    for tp_ in range(2):
        mall = M0 if tp_==0 else ((0x30<<32)|0x3)
        roff = 32*tp_
        TT=E0+20*tp_
        setexec(mall)
        for s in range(2):
            for e in range(8):
                a(f"ds_read_u16 v{TT+8*s+e}, v19 offset:{(8*s+e)*36+roff}")
        setexec(mall & 0xffffffff)
        for e in range(2): a(f"ds_read_u16 v{TT+16+e}, v20 offset:{(16+e)*36+roff}")
        setexec(mall & (0xffffffff<<32))
        for e in range(2,4): a(f"ds_read_u16 v{TT+16+e}, v20 offset:{(e-2)*36+roff}")
    a("s_waitcnt lgkmcnt(0)")
    for tp_ in range(2):
        mall = M0 if tp_==0 else ((0x30<<32)|0x3)
        TT=E0+20*tp_
        setexec(mall)
        for s in range(2):
            for d in range(4):
                a(f"v_lshl_or_b32 v{WF+4*(3*tp_+s)+d}, v{TT+8*s+2*d+1}, 16, v{TT+8*s+2*d}")
        setexec(mall & 0xffffffff)
        a(f"v_lshl_or_b32 v{WF+4*(3*tp_+2)}, v{TT+17}, 16, v{TT+16}")
        setexec(mall & (0xffffffff<<32))
        a(f"v_lshl_or_b32 v{WF+4*(3*tp_+2)+1}, v{TT+19}, 16, v{TT+18}")
    a("s_mov_b64 exec, -1")
    a("s_waitcnt vmcnt(16) lgkmcnt(0)")
    a("s_barrier")
    for op in reads(0): a(op)
    a(f"s_mov_b32 s{S_C}, 0\ns_mov_b32 s{S_SLOT}, 0")
    a.label(f"{name}_loop")
    for sig in range(4):
        st=ASET+16*(sig%2)
        a("s_waitcnt lgkmcnt(0)")
        for i in range(4): a(f"v_cndmask_b32 v{st+12+i}, v{st+12+i}, v{V_T3}, s[{S_MK}:{S_MK+1}]")
        if sig==3:
            for sg in range(4):
                for d in range(4):
                    a(f"v_dot2c_f32_bf16 v{V_SQ+(d%2)}, v{BSET+4*sg+d}, v{BSET+4*sg+d}")
            a(f"s_cmp_le_u32 s{S_C}, 6")
            a(f"s_cbranch_scc1 {name}_w8")
            a("s_waitcnt vmcnt(0)")
            a(f"s_branch {name}_wd")
            a.label(f"{name}_w8")
            a("s_waitcnt vmcnt(8)")
            a.label(f"{name}_wd")
            a("s_barrier")
            a(f"s_add_u32 s{S_SLOT}, s{S_SLOT}, 1\ns_cmp_eq_u32 s{S_SLOT}, 4\ns_cselect_b32 s{S_DELTA}, s66, s67\ns_cselect_b32 s{S_SLOT}, 0, s{S_SLOT}")
            for i in range(8): a(f"v_add_u32 v{V_A+i}, s{S_DELTA}, v{V_A+i}")
        nxt=(sig+1)%4
        rd=reads(nxt)
        pair = 0 if sig==3 else sig+1
        dm=dma_ops(pair)
        mf=[f"v_mfma_f32_32x32x16_bf16 {vr(ACC+16*T,16)}, {vr(st+4*T,4)}, {vr(BSET+4*sig,4)}, {vr(ACC+16*T,16)}" for T in range(4)]
        a(rd[0]); a(rd[1]); a(rd[2]); a(mf[0]); a(rd[3]); a(rd[4]); a(rd[5]); a(mf[1]); a(rd[6]); a(rd[7]); a(rd[8]); a(mf[2])
        lab=f"{name}_nd{sig}"
        if sig==3:
            a(f"s_cmp_gt_u32 s{S_C}, 5")
            a(f"s_cbranch_scc1 {lab}")
            a(f"s_lshl_b32 s55, s{S_W}, 12\ns_add_u32 s55, s55, {4*SLOT}\ns_cmp_eq_u32 s{S_DM0}, s55\ns_cselect_b32 s56, {4*SLOT}, 0\ns_sub_u32 s{S_DM0}, s{S_DM0}, s56")
        else:
            a(f"s_sub_u32 s55, s{S_C}, 1\ns_cmp_gt_u32 s55, 5")
            a(f"s_cbranch_scc1 {lab}")
        for op in dm: a(op)
        if sig==2:
            for op in dma_advance(): a(op)
        a.label(lab)
        a(mf[3])
        lab2=f"{name}_nc{sig}"
        a(f"s_cmp_lg_u32 s{S_W}, {sig}")
        a(f"s_cbranch_scc1 {lab2}")
        for T in range(4):
            for d in range(4):
                a(f"v_dot2c_f32_bf16 v{V_CS+T}, s{S_ONES}, v{st+4*T+d}")
        a.label(lab2)
    a(f"s_add_u32 s{S_C}, s{S_C}, 1\ns_cmp_lt_u32 s{S_C}, 9")
    a(f"s_cbranch_scc1 {name}_loop")
    a("s_waitcnt lgkmcnt(0)")
    stamp(a,0)
    if DEBUG: dump_regs(a, list(range(ACC,ACC+64))+[V_SQ,V_SQ+1]+list(range(V_CS,V_CS+4))+list(range(WF,WF+24)), S_WS, 0)
    for T in range(4):
        a(f"v_mov_b32 v{E0+T}, v{V_CS+T}")
    a(f"v_mov_b32 v{E0+4}, v{V_SQ}\nv_add_f32 v{V_SQ}, v{V_SQ}, v{V_SQ+1}\nv_mov_b32 v{E0+4}, v{V_SQ}")
    a("s_nop 1")
    for T in range(4): a(f"v_permlane32_swap_b32 v{V_CS+T}, v{E0+T}")
    a(f"v_permlane32_swap_b32 v{V_SQ}, v{E0+4}")
    a("s_nop 1")
    for T in range(4): a(f"v_add_f32 v{V_CS+T}, v{V_CS+T}, v{E0+T}")
    a(f"v_add_f32 v{V_SQ}, v{V_SQ}, v{E0+4}")
    a(f"v_and_b32 v16, 31, v{L}\nv_lshlrev_b32 v16, 2, v16\nv_add_u32 v16, {CS}, v16")
    setexec(0xffffffff)
    for T in range(4): a(f"ds_add_f32 v16, v{V_CS+T} offset:{128*T}")
    a("s_mov_b64 exec, -1")
    MEAN=E0+5; RSTD=E0+6; NM=E0+7
    inv=f2u(1.0/576.0)
    a(f"v_mul_f32 v{MEAN}, {inv}, v{ACC+48+12}")
    a(f"v_mul_f32 v{RSTD}, {inv}, v{V_SQ}")
    a(f"v_fma_f32 v{RSTD}, -v{MEAN}, v{MEAN}, v{RSTD}")
    a(f"v_max_f32 v{RSTD}, 0, v{RSTD}\nv_add_f32 v{RSTD}, {f2u(1e-5)}, v{RSTD}\nv_rsq_f32 v{RSTD}, v{RSTD}")
    a(f"v_sub_f32 v{NM}, 0, v{MEAN}")
    a("s_waitcnt lgkmcnt(0)")
    a("s_barrier")
    a(f"v_lshrrev_b32 v16, 5, v{L}\nv_lshlrev_b32 v16, 4, v16\nv_add_u32 v16, {CS}, v16")
    CSR=E0+8
    for T in range(4):
        for j in range(4):
            if T==3 and j==3: continue
            a(f"ds_read_b128 {vr(CSR+16*T+4*j,4)}, v16 offset:{T*128+j*32}")
    a("s_waitcnt lgkmcnt(0)")
    for T in range(4):
        for R in range(16):
            if T==3 and R>=12: continue
            a(f"v_fma_f32 v{ACC+16*T+R}, v{NM}, v{CSR+16*T+R}, v{ACC+16*T+R}")
        for R in range(16):
            if T==3 and R>=12: continue
            a(f"v_mul_f32 v{ACC+16*T+R}, v{ACC+16*T+R}, v{RSTD}")
    QB=16; KB=28
    for (B,T,x) in ((QB,0,0),(KB,1,4)):
        for i in range(8): a(f"v_cvt_pk_bf16_f32 v{B+i}, v{ACC+16*T+2*i}, v{ACC+16*T+2*i+1}")
        a(f"v_cvt_pk_bf16_f32 v{B+8}, v{ACC+48+x}, v{ACC+48+x+1}")
        a(f"v_cvt_pk_bf16_f32 v{B+9}, v{ACC+48+x+2}, v{ACC+48+x+3}")
        a(f"v_mov_b32 v{B+10}, 0\nv_mov_b32 v{B+11}, 0")
    PK0=CSR; PK1=CSR+16; PQ0=CSR+32; PQ1=CSR+48
    a("s_nop 1")
    for (B,P0,P1) in ((KB,PK0,PK1),(QB,PQ0,PQ1)):
        for tp_,P in ((0,P0),(1,P1)):
            for s in range(3):
                c="0" if s==0 else vr(P,16)
                a(f"v_mfma_f32_32x32x16_bf16 {vr(P,16)}, {vr(WF+4*(3*tp_+s),4)}, {vr(B+4*s,4)}, {c}")
    T2=ACC+32; T3=ACC+48
    srcA=[T2+c for c in range(9)]+[None]+[T2+c for c in range(9,16)]+[T3+8,T3+9]+[None]
    srcB=[T3+10,T3+11]+[T2+c for c in range(0,7)]+[None]+[T2+c for c in range(7,16)]+[None]
    VS=ACC
    a("s_mov_b32 s60, 0\ns_mov_b32 s61, -1")
    for c in range(20):
        if srcA[c] is None: a(f"v_mov_b32 v{VS+c}, 1.0")
        else: a(f"v_cndmask_b32 v{VS+c}, v{srcA[c]}, v{srcB[c]}, s[60:61]")
    VP=ACC+20
    for i in range(10): a(f"v_cvt_pk_bf16_f32 v{VP+i}, v{VS+2*i}, v{VS+2*i+1}")
    a(f"v_and_b32 v40, 31, v{L}\ns_lshl_b32 s55, s{S_W}, 5\nv_add_u32 v40, s55, v40")
    a(f"v_lshrrev_b32 v41, 5, v{L}")
    a(f"v_mul_u32_u24 v42, 48, v40\nv_mul_u32_u24 v43, 6144, v41\nv_add3_u32 v42, v42, v43, {0}")
    a(f"v_add_u32 v42, {VI}, v42")
    a(f"ds_write_b128 v42, {vr(VP,4)}\nds_write_b128 v42, {vr(VP+4,4)} offset:16\nds_write_b64 v42, {vr(VP+8,2)} offset:32")
    POS=ACC+32; NEG=ACC+44
    TMP=ACC+0 if False else 232-8
    TMP=218
    MX=44; MN=45
    a("s_nop 7\ns_nop 3")
    for op in softmax_ops(PK0,PK1,MX,MN,POS,NEG,TMP): a(op)
    a(f"v_mul_u32_u24 v46, 80, v40\nv_mul_u32_u24 v47, 10240, v41\nv_add_u32 v46, v46, v47")
    a(f"ds_write_b128 v46, {vr(POS,4)}\nds_write_b128 v46, {vr(POS+4,4)} offset:16")
    a(f"ds_write_b128 v46, {vr(NEG,4)} offset:32\nds_write_b128 v46, {vr(NEG+4,4)} offset:48")
    a(f"v_mov_b32 v{POS+9}, v{NEG+8}")
    a(f"ds_write_b64 v46, {vr(POS+8,2)} offset:64")
    a("s_waitcnt lgkmcnt(0)")
    a("s_barrier")
    a(f"v_lshrrev_b32 v16, 4, v{L}\nv_and_b32 v17, 15, v{L}\nv_lshrrev_b32 v18, 2, v17\nv_lshl_add_u32 v18, v16, 2, v18\nv_and_b32 v19, 3, v17\nv_lshlrev_b32 v19, 3, v19")
    a(f"s_and_b32 s55, s{S_W}, 1\ns_lshr_b32 s56, s{S_W}, 1")
    a(f"s_mul_i32 s57, s55, 6144\ns_lshl_b32 s62, s56, 5\ns_add_u32 s57, s57, s62\ns_add_u32 s57, s57, {VI}")
    a(f"v_mul_u32_u24 v20, 48, v18\nv_add3_u32 v20, v20, v19, s57")
    a(f"s_mul_i32 s57, s55, 10240")
    a(f"v_mul_u32_u24 v21, 80, v18\nv_add3_u32 v21, v21, v19, s57")
    KA=48; KBF=64; KC=24
    for ks in range(4):
        a(f"ds_read_b64_tr_b16 {vr(KA+4*ks,2)}, v20 offset:{ks*32*48}\nds_read_b64_tr_b16 {vr(KA+4*ks+2,2)}, v20 offset:{ks*32*48+16*48}")
    for u in range(3):
        for ks in range(4):
            r=KBF+16*u+4*ks
            a(f"ds_read_b64_tr_b16 {vr(r,2)}, v21 offset:{ks*32*80+32*u}\nds_read_b64_tr_b16 {vr(r+2,2)}, v21 offset:{ks*32*80+16*80+32*u}")
    a("s_waitcnt lgkmcnt(0)")
    for ks in range(4):
        for u in range(3):
            c="0" if ks==0 else vr(KC+4*u,4)
            a(f"v_mfma_f32_16x16x32_bf16 {vr(KC+4*u,4)}, {vr(KA+4*ks,4)}, {vr(KBF+16*u+4*ks,4)}, {c}")
    a(f"v_and_b32 v17, 15, v{L}")
    a(f"s_lshl_b32 s62, s56, 4\nv_lshl_add_u32 v22, v16, 2, s62")
    a(f"v_lshrrev_b32 v23, 3, v17\nv_mul_u32_u24 v23, 320, v23\nv_and_b32 v36, 7, v17\nv_add_u32 v23, v23, v36\nv_lshl_add_u32 v23, v22, 3, v23")
    a(f"v_lshrrev_b32 v37, 1, v17\nv_mul_u32_u24 v37, 40, v37\nv_and_b32 v36, 1, v17\nv_add_u32 v37, v37, v36\nv_lshl_add_u32 v37, v22, 1, v37\nv_add_u32 v37, 640, v37")
    a(f"s_mul_i32 s57, s55, 720")
    a(f"v_add_u32 v23, s57, v23\nv_lshlrev_b32 v23, 2, v23\nv_add_u32 v23, {STG}, v23")
    a(f"v_add_u32 v37, s57, v37\nv_lshlrev_b32 v37, 2, v37\nv_add_u32 v37, {STG}, v37")
    a(f"s_cmp_eq_u32 s56, 0")
    a("s_cselect_b32 s62, -1, 0xffff\ns_cselect_b32 s63, -1, 0")
    a("s_cselect_b32 s64, 0x000f000f, 0xf\ns_cselect_b32 s65, 0x000f000f, 0")
    a("s_nop 3")
    a("s_mov_b64 exec, s[62:63]")
    for u in range(2):
        for i in range(4): a(f"ds_write_b32 v23, v{KC+4*u+i} offset:{(u*160+i*8)*4}")
    a("s_mov_b64 exec, s[64:65]")
    for i in range(4): a(f"ds_write_b32 v37, v{KC+8+i} offset:{i*2*4}")
    a("s_mov_b64 exec, -1")
    a("s_waitcnt lgkmcnt(0)")
    a("s_barrier")
    a(f"v_lshlrev_b32 v16, 2, v0\nv_add_u32 v17, {STG}, v16")
    for m in range(6): a(f"ds_read_b32 v{24+m}, v17 offset:{1024*m}")
    a(f"s_mul_i32 s57, s{S_HP}, 5760\ns_add_u32 s57, s57, {KVA}")
    a("s_waitcnt lgkmcnt(0)")
    for m in range(5):
        a(f"buffer_atomic_add_f32 v{24+m}, v16, s[{S_WS}:{S_WS+3}], s57 offen offset:{1024*m}") if 1024*m<4096 else None
    a(f"s_add_u32 s62, s57, 4096")
    a(f"buffer_atomic_add_f32 v28, v16, s[{S_WS}:{S_WS+3}], s62 offen")
    a(f"v_cmp_gt_u32 vcc, 160, v0\ns_and_saveexec_b64 s[64:65], vcc")
    a(f"s_cbranch_execz {name}_na")
    a(f"buffer_atomic_add_f32 v29, v16, s[{S_WS}:{S_WS+3}], s62 offen offset:1024")
    a.label(f"{name}_na")
    a("s_mov_b64 exec, s[64:65]")
    for op in softmax_ops(PQ0,PQ1,MX,MN,POS,NEG,TMP): a(op)
    a(f"v_and_b32 v16, 31, v{L}\nv_lshrrev_b32 v17, 5, v{L}\nv_mul_u32_u24 v17, 2304, v17")
    a(f"v_lshl_add_u32 v18, v16, 4, v17\nv_lshl_add_u32 v19, v16, 2, v17")
    a(f"s_lshl_b32 s57, s{S_TP}, 5\ns_lshl_b32 s62, s{S_HP}, 1\ns_add_u32 s57, s57, s62\ns_mul_i32 s57, s57, 2304\ns_add_u32 s57, s57, {PHIQ}")
    fl="sc1"
    a(f"buffer_store_dwordx4 {vr(POS,4)}, v18, s[{S_WS}:{S_WS+3}], s57 offen {fl}")
    a(f"buffer_store_dwordx4 {vr(POS+4,4)}, v18, s[{S_WS}:{S_WS+3}], s57 offen offset:1024 {fl}")
    a(f"buffer_store_dword v{POS+8}, v19, s[{S_WS}:{S_WS+3}], s57 offen offset:2048 {fl}")
    a(f"buffer_store_dwordx4 {vr(NEG,4)}, v18, s[{S_WS}:{S_WS+3}], s57 offen offset:512 {fl}")
    a(f"buffer_store_dwordx4 {vr(NEG+4,4)}, v18, s[{S_WS}:{S_WS+3}], s57 offen offset:1536 {fl}")
    a(f"buffer_store_dword v{NEG+8}, v19, s[{S_WS}:{S_WS+3}], s57 offen offset:2176 {fl}")
    stamp_end(a,S_WS,4)
    a.label(f"{name}_end")
    a("s_endpgm")
    return dict(name=name, grid=256, block=256, lds=LDS_BYTES, vgprs=256, accum=256)
```

```python
from common import *
import common, struct
def f2u(x): return "0x%08x" % struct.unpack("<I", struct.pack("<f", x))[0]

V_LANE=1; V_L16=2; V_L4=3; V_KV=4; V_KV2=5; V_OW=6; V_X=7; V_HF=8; V_T=9; V_RB=10
C0=16
KA=48
OP=72
KV=108
XR=252
PH=144
S_WS=8; S_X=12
S_W=40; S_TP=41; S_NQ=42

def gen_p2(a, name="p2_kernel"):
    kernel_head(a, name)
    a("s_cmp_ge_u32 s2, 256")
    a(f"s_cbranch_scc1 {name}_end")
    stamp_begin(a)
    a(f"s_load_dwordx2 s[4:5], s[0:1], {KA_WS}")
    a(f"s_load_dwordx2 s[6:7], s[0:1], {KA_X}")
    a(f"v_and_b32 v{V_LANE}, 63, v0")
    a(f"v_lshrrev_b32 v{V_T}, 6, v0")
    a("s_nop 0")
    a(f"v_readfirstlane_b32 s{S_W}, v{V_T}")
    a("s_and_b32 s53, s2, 7\ns_lshr_b32 s54, s2, 3")
    a(f"s_lshl_b32 s53, s53, 3\ns_lshr_b32 s55, s54, 2\ns_add_u32 s{S_TP}, s53, s55\ns_and_b32 s{S_NQ}, s54, 3")
    a(f"v_lshlrev_b32 v{V_L16}, 4, v{V_LANE}")
    a(f"v_lshlrev_b32 v{V_L4}, 2, v{V_LANE}")
    a(f"v_and_b32 v11, 31, v{V_LANE}")
    a(f"v_lshrrev_b32 v12, 3, v11")
    a(f"v_and_b32 v13, 3, v11")
    a(f"v_lshl_add_u32 v12, v12, 2, v13")
    a(f"v_lshrrev_b32 v13, 2, v11\nv_and_b32 v13, 1, v13")
    a(f"v_mul_u32_u24 v13, 10, v13")
    a(f"v_add_u32 v13, v13, v12")
    a(f"v_cmp_gt_u32 vcc, 10, v12")
    a("s_nop 1")
    a(f"v_cndmask_b32 v13, 0, v13, vcc")
    a(f"v_lshrrev_b32 v14, 5, v{V_LANE}")
    a(f"v_mul_u32_u24 v15, 640, v14")
    a(f"v_lshl_add_u32 v{V_KV}, v13, 5, v15")
    a(f"v_mul_u32_u24 v15, 160, v14")
    a(f"v_lshl_add_u32 v{V_KV2}, v13, 3, v15")
    a(f"v_add_u32 v{V_KV2}, 2560, v{V_KV2}")
    a(f"v_lshrrev_b32 v12, 4, v11")
    a(f"v_mul_u32_u24 v12, 18432, v12")
    a(f"v_and_b32 v13, 15, v11")
    a(f"v_lshl_add_u32 v12, v13, 4, v12")
    a(f"v_mul_u32_u24 v13, 2304, v14")
    a(f"v_add_u32 v12, v12, v13")
    a(f"s_mul_i32 s50, s{S_W}, 4608")
    a(f"v_add_u32 v{V_OW}, s50, v12")
    a(f"v_and_b32 v12, 15, v{V_LANE}")
    a(f"v_mul_u32_u24 v12, 1152, v12")
    a(f"v_lshrrev_b32 v13, 4, v{V_LANE}")
    a(f"v_lshl_add_u32 v{V_X}, v13, 3, v12")
    for st in range(2):
        for r in (9,10,11): a(f"v_mov_b32 v{KA+12*st+r}, 0")
    for hh in range(8):
        for r in (9,10,11): a(f"v_accvgpr_write_b32 a{PH+12*hh+r}, 0")
    a("s_waitcnt lgkmcnt(0)")
    srd(a, S_WS, 4, WS_END); srd(a, S_X, 6, S*D*2)
    a(f"s_lshl_b32 s50, s{S_TP}, 5\ns_lshl_b32 s51, s{S_W}, 3\ns_add_u32 s50, s50, s51\ns_mul_i32 s44, s50, 2304\ns_add_u32 s44, s44, {PHIQ}")
    a(f"s_mul_i32 s45, s51, {KVA_HEAD}\ns_add_u32 s45, s45, {KVA}")
    nload=0
    for hh in range(8):
        p=PH+12*hh; kv=KV+18*hh
        a(f"buffer_load_dwordx4 {ar(p,4)}, v{V_L16}, s[{S_WS}:{S_WS+3}], s44 offen")
        a(f"buffer_load_dwordx4 {ar(p+4,4)}, v{V_L16}, s[{S_WS}:{S_WS+3}], s44 offen offset:1024")
        a(f"buffer_load_dword {ar(p+8)}, v{V_L4}, s[{S_WS}:{S_WS+3}], s44 offen offset:2048")
        for sp in range(2):
            a(f"buffer_load_dwordx4 {vr(kv+8*sp,4)}, v{V_KV}, s[{S_WS}:{S_WS+3}], s45 offen offset:{1280*sp}")
            a(f"buffer_load_dwordx4 {vr(kv+8*sp+4,4)}, v{V_KV}, s[{S_WS}:{S_WS+3}], s45 offen offset:{1280*sp+16}")
        a(f"buffer_load_dwordx2 {vr(kv+16,2)}, v{V_KV2}, s[{S_WS}:{S_WS+3}], s45 offen")
        a(f"s_add_u32 s44, s44, 2304\ns_add_u32 s45, s45, {KVA_HEAD}")
    a(f"s_mul_i32 s46, s{S_NQ}, 9\ns_add_u32 s46, s46, s{S_W}")
    a(f"s_mul_i32 s47, s46, 18432\ns_add_u32 s47, s47, {WOF}")
    wof_loads=[]
    for tl in range(2):
        for s in range(18):
            off=tl*4*18432 + s*1024
            wof_loads.append((tl,s,off))
    wi=0
    def issue_wof(n):
        nonlocal wi
        for _ in range(n):
            if wi>=len(wof_loads): return
            tl,s,off=wof_loads[wi]; wi+=1
            a(f"s_add_u32 s48, s47, {off - (off%4096)}")
            a(f"buffer_load_dwordx4 {ar(72*tl+4*s,4)}, v{V_L16}, s[{S_WS}:{S_WS+3}], s48 offen offset:{off%4096}")
    issued=64;
    def fin_head(hh):
        c=C0+16*(hh%2)
        ops=[f"v_add_f32 v{c+9}, {f2u(1e-6)}, v{c+9}", f"v_rcp_f32 v{c+9}, v{c+9}", "s_nop 0"]
        ops+=[f"v_mul_f32 v{c+i}, v{c+i}, v{c+9}" for i in range(9)]
        m=hh//2
        if hh%2==0:
            for i in range(4): ops.append(f"v_cvt_pk_bf16_f32 v{OP+9*m+i}, v{c+2*i}, v{c+2*i+1}")
            ops.append(f"v_mov_b32 v{V_T}, v{c+8}")
        else:
            ops.append(f"v_cvt_pk_bf16_f32 v{OP+9*m+4}, v{V_T}, v{c}")
            for i in range(4): ops.append(f"v_cvt_pk_bf16_f32 v{OP+9*m+5+i}, v{c+1+2*i}, v{c+2+2*i}")
        return ops
    for hh in range(8):
        p=PH+12*hh; kv=KV+18*hh; ka=KA+12*(hh%2); c=C0+16*(hh%2)
        a(f"s_waitcnt vmcnt({min(63, issued-8*(hh+1))})")
        for sp in range(2):
            for i in range(4): a(f"v_cvt_pk_bf16_f32 v{ka+4*sp+i}, v{kv+8*sp+2*i}, v{kv+8*sp+2*i+1}")
        a(f"v_cvt_pk_bf16_f32 v{ka+8}, v{kv+16}, v{kv+17}")
        issue_wof(5 if hh<7 else 1); issued=64+wi
        a(f"v_mfma_f32_32x32x16_bf16 {vr(c,16)}, {vr(ka,4)}, {ar(p,4)}, 0")
        a(f"v_mfma_f32_32x32x16_bf16 {vr(c,16)}, {vr(ka+4,4)}, {ar(p+4,4)}, {vr(c,16)}")
        a(f"v_mfma_f32_32x32x16_bf16 {vr(c,16)}, {vr(ka+8,4)}, {ar(p+8,4)}, {vr(c,16)}")
        if hh>0:
            for op in fin_head(hh-1): a(op)
    a("s_nop 7\ns_nop 7")
    for op in fin_head(7): a(op)
    for q in range(9):
        a(f"ds_write_b128 v{V_OW}, {vr(OP+4*q,4)} offset:{256*q}")
    a(f"s_cmp_lg_u32 s{S_W}, 0")
    a(f"s_cbranch_scc1 {name}_no3a")
    for s in range(18):
        off=8*18432+s*1024
        a(f"s_add_u32 s48, s47, {off - (off%4096)}")
        a(f"buffer_load_dwordx4 {ar(PH+4*s,4)}, v{V_L16}, s[{S_WS}:{S_WS+3}], s48 offen offset:{off%4096}")
    a.label(f"{name}_no3a")
    XRES=C0
    a(f"s_mul_i32 s49, s{S_TP}, {32*1152}\ns_lshl_b32 s50, s46, 5\ns_add_u32 s49, s49, s50")
    for tl in range(3):
        if tl==2:
            a(f"s_cmp_lg_u32 s{S_W}, 0")
            a(f"s_cbranch_scc1 {name}_no3x")
        for tt in range(2):
            a(f"s_add_u32 s50, s49, {tt*16*1152 + tl*128}")
            a(f"buffer_load_dwordx2 {vr(XRES+4*tl+2*tt,2)}, v{V_X}, s[{S_X}:{S_X+3}], s50 offen")
    a.label(f"{name}_no3x")
    a("s_waitcnt lgkmcnt(0)")
    a("s_barrier")
    for tt in range(2):
        for s in range(18):
            a(f"ds_read_b128 {vr(KV+4*(tt*18+s),4)}, v{V_L16} offset:{tt*18432+s*1024}")
    ACC=32
    a("s_waitcnt vmcnt(0) lgkmcnt(0)")
    def tile(tl):
        ac=ACC+8*(tl%2)
        abase = 72*tl if tl<2 else PH
        for s in range(18):
            for tt in range(2):
                c = "0" if s==0 else vr(ac+4*tt,4)
                a(f"v_mfma_f32_16x16x32_bf16 {vr(ac+4*tt,4)}, {ar(abase+4*s,4)}, {vr(KV+4*(tt*18+s),4)}, {c}")
    def epi(tl):
        ac=ACC+8*(tl%2)
        a(f"s_add_u32 s50, s46, {4*tl}\ns_lshr_b32 s51, s50, 1\ns_and_b32 s52, s50, 1\ns_lshl_b32 s52, s52, 3")
        for tt in range(2):
            xr=XRES+4*tl+2*tt
            t0,t1=OP,OP+1
            a(f"v_lshlrev_b32 v{OP}, 16, v{xr}\nv_and_b32 v{OP+1}, 0xffff0000, v{xr}\nv_lshlrev_b32 v{OP+2}, 16, v{xr+1}\nv_and_b32 v{OP+3}, 0xffff0000, v{xr+1}")
            for i in range(4): a(f"v_add_f32 v{OP+i}, v{OP+i}, v{ac+4*tt+i}")
            a(f"v_cvt_pk_bf16_f32 v{OP+4+2*tt}, v{OP}, v{OP+1}\nv_cvt_pk_bf16_f32 v{OP+5+2*tt}, v{OP+2}, v{OP+3}")
            a(f"s_lshl_b32 s55, s{S_TP}, 1\ns_add_u32 s55, s55, {tt}\ns_mul_i32 s55, s55, 18\ns_add_u32 s55, s55, s51\ns_lshl_b32 s55, s55, 10\ns_add_u32 s55, s55, s52\ns_add_u32 s55, s55, {HF}")
            a(f"buffer_store_dwordx2 {vr(OP+4+2*tt,2)}, v{V_L16}, s[{S_WS}:{S_WS+3}], s55 offen sc1")
    tile(0); tile(1)
    epi(0)
    a(f"s_cmp_lg_u32 s{S_W}, 0")
    a(f"s_cbranch_scc1 {name}_no3t")
    tile(2)
    epi(1)
    a("s_nop 7")
    epi(2)
    a(f"s_branch {name}_fin")
    a.label(f"{name}_no3t")
    a("s_nop 7")
    epi(1)
    a.label(f"{name}_fin")
    stamp_end(a, S_WS, 3)
    a.label(f"{name}_end")
    a("s_endpgm")
    return dict(name=name, grid=256, block=256, lds=36864, vgprs=512, accum=256)
```

```python
from common import *

def gen_red(a, name="red_kernel"):
    kernel_head(a, name)
    a("s_cmp_ge_u32 s2, 256")
    a(f"s_cbranch_scc1 {name}_end")
    stamp_begin(a)
    a(f"s_load_dwordx2 s[4:5], s[0:1], {KA_WS}")
    a(f"s_load_dwordx2 s[6:7], s[0:1], {KA_B2}")
    a(f"s_load_dwordx2 s[36:37], s[0:1], {KA_OUT}")
    a("v_and_b32 v1, 63, v0")
    a("v_lshrrev_b32 v2, 6, v0")
    a("s_nop 0")
    a("v_readfirstlane_b32 s40, v2")
    a("s_lshr_b32 s41, s2, 3")
    a("s_and_b32 s42, s2, 3")
    a("s_lshr_b32 s43, s2, 2\ns_and_b32 s43, s43, 1")
    a("v_lshlrev_b32 v3, 4, v1")
    a("v_lshrrev_b32 v4, 4, v1")
    a("v_and_b32 v5, 15, v1")
    a("v_lshlrev_b32 v6, 3, v4")
    a("v_mul_u32_u24 v7, 1152, v5")
    a("v_add_u32 v7, v7, v6")
    a("s_mul_i32 s44, s42, 9\ns_mul_i32 s45, s40, 3\ns_add_u32 s44, s44, s45")
    a("s_waitcnt lgkmcnt(0)")
    srd(a, 8, 4, WS_END); srd(a, 12, 6, D*2); srd(a, 16, 36, S*D*2)
    a(f"s_mul_i32 s46, s41, {8*72}\ns_lshl_b32 s47, s44, 1\ns_add_u32 s46, s46, s47\ns_add_u32 s46, s46, s43\ns_lshl_b32 s46, s46, 10\ns_add_u32 s46, s46, {PART}")
    a("s_lshl_b32 s48, s41, 2\ns_lshl_b32 s49, s43, 1\ns_add_u32 s48, s48, s49")
    R=16
    NR=38
    for i in range(3):
        b=R+NR*i
        for c in range(8):
            a(f"s_add_u32 s50, s46, {c*73728 + i*2048}")
            a(f"buffer_load_dwordx4 {vr(b+4*c,4)}, v3, s[8:11], s50 offen")
        a(f"s_add_u32 s51, s44, {i}")
        a("s_lshr_b32 s52, s51, 1\ns_and_b32 s53, s51, 1\ns_lshl_b32 s53, s53, 3")
        for u in range(2):
            a(f"s_add_u32 s54, s48, {u}\ns_mul_i32 s54, s54, 18\ns_add_u32 s54, s54, s52\ns_lshl_b32 s54, s54, 10\ns_add_u32 s54, s54, s53\ns_add_u32 s54, s54, {HF}")
            a(f"buffer_load_dwordx2 {vr(b+32+2*u,2)}, v3, s[8:11], s54 offen")
        a("s_lshl_b32 s55, s51, 5")
        a(f"buffer_load_dwordx2 {vr(b+36,2)}, v6, s[12:15], s55 offen")
    a("s_mov_b32 s60, 0x00003f80\ns_mov_b32 s61, 0x3f800000")
    ACC=132
    for i in range(3):
        b=R+NR*i
        a(f"s_waitcnt vmcnt({11*(2-i) + (2*i)})")
        for u in range(2):
            a(f"v_lshlrev_b32 v{ACC+4*u}, 16, v{b+36}\nv_and_b32 v{ACC+4*u+1}, 0xffff0000, v{b+36}")
            a(f"v_lshlrev_b32 v{ACC+4*u+2}, 16, v{b+37}\nv_and_b32 v{ACC+4*u+3}, 0xffff0000, v{b+37}")
        srcs=[(b+4*c+2*u, u) for c in range(8) for u in range(2)] + [(b+32+2*u,u) for u in range(2)]
        for (r,u) in srcs:
            for d in range(2):
                a(f"v_dot2c_f32_bf16 v{ACC+4*u+2*d}, s60, v{r+d}")
                a(f"v_dot2c_f32_bf16 v{ACC+4*u+2*d+1}, s61, v{r+d}")
        a("s_nop 2")
        for u in range(2):
            a(f"v_cvt_pk_bf16_f32 v{ACC+8+2*u}, v{ACC+4*u}, v{ACC+4*u+1}")
            a(f"v_cvt_pk_bf16_f32 v{ACC+8+2*u+1}, v{ACC+4*u+2}, v{ACC+4*u+3}")
        for u in range(2):
            a(f"s_add_u32 s54, s48, {u}\ns_mul_i32 s54, s54, {16*1152}\ns_add_u32 s51, s44, {i}\ns_lshl_b32 s51, s51, 5\ns_add_u32 s54, s54, s51")
            a(f"buffer_store_dwordx2 {vr(ACC+8+2*u,2)}, v7, s[16:19], s54 offen")
        a("s_nop 1")
    stamp_end(a, 8, 2)
    a.label(f"{name}_end")
    a("s_endpgm")
    return dict(name=name, grid=256, block=192, lds=0, vgprs=160)
```

```python
import sys
sys.path.insert(0,'gen')
from make import *
def gen_dummy(n):
    def g(a):
        name=f"dummy{n}_kernel"
        kernel_head(a,name)
        a("s_endpgm")
        return dict(name=name,grid=256,block=64,lds=0,vgprs=8)
    return g
base=[gen_p0,gen_p1,gen_p2,gen_ffn,gen_red]
open('varA.s','w').write(make(base))
open('varB.s','w').write(make(base+[gen_dummy(i) for i in range(4)]))
open('varC.s','w').write(make([gen_dummy(i) for i in range(4)]+base))
```
